```python
import torch

def _softmax(x, axis=-1):
    return torch.softmax(x, dim=axis)
def _gelu(x):
    return torch.nn.functional.gelu(x, approximate="tanh")
def _silu(x):
    return torch.nn.functional.silu(x)
def _sigmoid(x):
    return torch.sigmoid(x)
def _layernorm(x, axis=-1, eps=1e-5):
    m = x.mean(dim=axis, keepdim=True)
    v = x.var(dim=axis, keepdim=True, unbiased=False)
    return (x - m) / torch.sqrt(v + eps)
def _scatter_add(tgt, idx, src, axis=0):
    return tgt.clone().index_add_(axis, idx, src)
def _segment_sum(src, seg, n):
    out = torch.zeros((n,) + src.shape[1:], dtype=src.dtype)
    return out.index_add_(0, seg, src)
def _pad(x, pw):
    flat = tuple(v for pair in reversed(pw) for v in pair)
    return torch.nn.functional.pad(x, flat)

kernel_name = 'gated_mix__mha_block__linear_kernel_hedgehog__prompt'

def setup_inputs():

    _w = (lambda a: (lambda t: t.to(torch.bfloat16) if t.is_floating_point() else t)(torch.as_tensor(a)))
    def _A_setup():
        B, S, D, H = 1, 2048, 640, 32
        return {
            "x": _w((lambda *s: torch.randn(*s, dtype=torch.bfloat16) * 0.05)(B, S, D)),
            "wqkv": _w((lambda *s: torch.randn(*s, dtype=torch.bfloat16) * 0.8)(D, 3 * D)),
            "wo": _w((lambda *s: torch.randn(*s, dtype=torch.bfloat16) * 0.05)(D, D)),
        }
    _A_in = _A_setup()

    def _B_setup():
        B, S, D, H = 1, 2048, 640, 32
        Dh = D // H
        return {
            "x": _w((lambda *s: torch.randn(*s, dtype=torch.bfloat16) * 0.05)(B, S, D)),
            "wqkv": _w((lambda *s: torch.randn(*s, dtype=torch.bfloat16) * 1.6)(D, 3 * D)),
            "w_phi": _w((lambda *s: torch.randn(*s, dtype=torch.bfloat16) * 1.6)(H, Dh, Dh) * (Dh ** -0.5)),
            "wo": _w((lambda *s: torch.randn(*s, dtype=torch.bfloat16) * 0.05)(D, D)),
        }
    _B_in = _B_setup()

    return {
        "A_x": _A_in["x"],
        "A_wqkv": _A_in["wqkv"],
        "A_wo": _A_in["wo"],
        "B_x": _B_in["x"],
        "B_wqkv": _B_in["wqkv"],
        "B_w_phi": _B_in["w_phi"],
        "B_wo": _B_in["wo"],
        "gate_w": _w((lambda *s: torch.randn(*s, dtype=torch.bfloat16) * 0.05)(640) * 16.0),
    }

def reference(A_x, A_wqkv, A_wo, B_x, B_wqkv, B_w_phi, B_wo, gate_w):
    def _A_ref(x, wqkv, wo):
        B, S, D = x.shape
        H = 32
        Dh = D // H
        qkv = (lambda x, *d: x.permute(*d))((x @ wqkv).reshape(B, S, 3, H, Dh), 2, 0, 3, 1, 4)
        q, k, v = qkv[0], qkv[1], qkv[2]
        scores = torch.einsum("bhqd,bhkd->bhqk", q, k) * (Dh ** -0.5)
        p = _softmax(scores, axis=-1)
        o = torch.einsum("bhqk,bhkd->bhqd", p, v)
        return (lambda x, *d: x.permute(*d))(o, 0, 2, 1, 3).reshape(B, S, D) @ wo

    def _B_ref(x, wqkv, w_phi, wo):
        B, S, D = x.shape
        H = 32; Dh = D // H
        qkv = (lambda x, *d: x.permute(*d))((x @ wqkv).reshape(B, S, 3, H, Dh), 2, 0, 3, 1, 4)
        q, k, v = qkv[0], qkv[1], qkv[2]
        pq = torch.einsum("bhsd,hdf->bhsf", q, w_phi)
        pk = torch.einsum("bhsd,hdf->bhsf", k, w_phi)
        phi_q = torch.concatenate([_softmax(pq, axis=-1), _softmax(-pq, axis=-1)], axis=-1)
        phi_k = torch.concatenate([_softmax(pk, axis=-1), _softmax(-pk, axis=-1)], axis=-1)
        kv = torch.einsum("bhsf,bhsd->bhfd", phi_k, v)
        z  = torch.einsum("bhsf->bhf", phi_k)
        num = torch.einsum("bhqf,bhfd->bhqd", phi_q, kv)
        den = torch.einsum("bhqf,bhf->bhq", phi_q, z)[..., None] + 1e-6
        o = num / den
        return (lambda x, *d: x.permute(*d))(o, 0, 2, 1, 3).reshape(B, S, D) @ wo

    x = A_x
    g = _sigmoid((x * gate_w).sum(-1, keepdims=True))
    a = _A_ref(x, A_wqkv, A_wo)
    b = _B_ref(x, B_wqkv, B_w_phi, B_wo)
    return g * a + (1 - g) * b
```

```python
from gen import *

CH = 8 * PAIR
K2_KVZ = 131072
K2_FLAG = K2_KVZ + 2048
K2_LDS = K2_FLAG + 64

def k2():
    e = E()
    S = [64, 96]; P = 128; O = 144; NM = 160; QL = 176; QH = 180
    KL0, KL1, KH = 184, 188, 192
    V = 196
    PQ = 212
    e("s_cmp_ge_u32 s2, 256")
    e("s_cbranch_scc1 K2_end")
    e("s_load_dwordx2 s[4:5], s[0:1], 0")
    e("s_load_dwordx2 s[6:7], s[0:1], 16")
    e("s_load_dwordx4 s[8:11], s[0:1], 48")
    e("s_load_dwordx2 s[12:13], s[0:1], 80")
    e("v_lshrrev_b32 v1, 6, v0")
    e("s_and_b32 s14, s2, 7")
    e("v_readfirstlane_b32 s3, v1")
    e("s_lshl_b32 s14, s14, 2")
    e("s_lshr_b32 s15, s2, 3")
    e("s_and_b32 s16, s15, 3")
    e("s_add_u32 s14, s14, s16")
    e("s_lshr_b32 s15, s15, 2")
    e("v_and_b32 v1, 63, v0")
    e("v_lshlrev_b32 v2, 4, v1")
    e("s_waitcnt lgkmcnt(0)")
    srd(e, 24, 12, WS_SIZE)
    e(f"s_mul_i32 s17, s14, {HEADSZ}")
    e("s_lshl_b32 s18, s15, 3")
    e("s_add_u32 s18, s18, s3")
    e("s_lshr_b32 s19, s18, 1")
    e(f"s_mul_i32 s19, s19, {PAIR}")
    e("s_add_u32 s19, s19, s17")
    e("s_and_b32 s20, s18, 1")
    e("s_lshl_b32 s21, s20, 10")
    e("s_add_u32 s21, s21, s19")
    e("s_lshl_b32 s22, s20, 8")
    e("s_add_u32 s22, s22, s19")
    e("v_and_b32 v3, 31, v1")
    e("v_lshlrev_b32 v4, 3, v3")
    e(f"buffer_load_dwordx4 {vr(QL,4)}, v2, s[24:27], s21 offen")
    e(f"buffer_load_dwordx2 {vr(QH,2)}, v4, s[24:27], s22 offen offset:2048")
    e("s_mov_b32 s44, 0")
    e.lab("K2_restart")
    e("s_lshl_b32 s19, s3, 10")
    e("s_mov_b32 m0, s19")
    e(f"s_add_u32 s20, s17, {WS_KV}")
    e("s_add_u32 s20, s20, s19")
    for i in range(16):
        e(f"buffer_load_dwordx4 v2, s[24:27], s20 offen lds")
        if i < 15:
            e("s_add_u32 m0, m0, 8192")
            e("s_add_u32 s20, s20, 8192")
    e("s_cmp_eq_u32 s44, 0")
    e("s_cbranch_scc0 K2_skipside")
    e(f"s_mul_i32 s19, s14, {PHIQ_HEAD}")
    e("s_mul_i32 s20, s18, 2560")
    e("s_add_u32 s19, s19, s20")
    e(f"s_add_u32 s19, s19, {WS_PHIQ}")
    e("v_lshrrev_b32 v5, 5, v1")
    e("v_lshlrev_b32 v6, 4, v3")
    e("v_lshl_add_u32 v6, v5, 3, v6")
    e(f"buffer_load_dwordx4 {vr(PQ,4)}, v2, s[24:27], s19 offen")
    e(f"buffer_load_dwordx4 {vr(PQ+4,4)}, v2, s[24:27], s19 offen offset:1024")
    e(f"buffer_load_dwordx2 {vr(PQ+8,2)}, v6, s[24:27], s19 offen offset:2048")
    e(f"s_mul_i32 s19, s14, {KVP_HEAD}")
    e(f"s_add_u32 s19, s19, {WS_KVP}")
    e("v_lshlrev_b32 v7, 4, v0")
    e("v_mov_b32 v8, 0x40000000")
    e("v_cmp_gt_u32 vcc, 210, v0")
    e("s_nop 1")
    e("v_cndmask_b32 v7, v8, v7, vcc")
    for i in range(16):
        e(f"buffer_load_dwordx4 {vr(64+4*i,4)}, v7, s[24:27], s19 offen")
        if i < 15: e(f"s_add_u32 s19, s19, {KVP_ONE}")
    e("s_cmp_lt_u32 s2, 128")
    e("s_cselect_b64 s[28:29], s[6:7], s[8:9]")
    e("s_mov_b32 s30, 819200")
    e("s_mov_b32 s31, 0x20000")
    e("s_and_b32 s19, s2, 127")
    e("s_mul_i32 s19, s19, 6400")
    e("v_lshlrev_b32 v9, 4, v0")
    e("v_cmp_gt_u32 vcc, 400, v0")
    e("s_nop 1")
    e("v_cndmask_b32 v9, v8, v9, vcc")
    e(f"buffer_load_dwordx4 v[128:131], v9, s[28:31], s19 offen")
    e("v_mul_u32_u24 v10, 820, v0")
    e("v_lshrrev_b32 v10, 16, v10")
    e("v_mul_u32_u24 v11, 80, v10")
    e("v_sub_u32 v11, v0, v11")
    e("s_mul_i32 s19, s2, 5")
    e("v_add_u32 v10, s19, v10")
    e("v_mul_u32_u24 v12, 6554, v11")
    e("v_lshrrev_b32 v12, 16, v12")
    e("v_mul_u32_u24 v13, 10, v12")
    e("v_sub_u32 v13, v11, v13")
    e("v_and_b32 v14, 0xffffffe3, v10")
    e("v_bfe_u32 v15, v10, 2, 1")
    e("v_lshl_add_u32 v14, v15, 4, v14")
    e("v_bfe_u32 v15, v10, 3, 2")
    e("v_lshl_add_u32 v14, v15, 2, v14")
    e("v_mul_u32_u24 v14, 160, v14")
    e("v_lshl_add_u32 v14, v13, 4, v14")
    e(f"s_mov_b32 s19, {WOP_TILE}")
    e("v_mul_lo_u32 v12, v12, s19")
    e("v_add_u32 v14, v14, v12")
    e("v_cndmask_b32 v14, v8, v14, vcc")
    srd(e, 32, 4, 2621440)
    srd(e, 36, 10, 1280)
    e("s_lshl_b32 s19, s2, 3")
    e("s_add_u32 s19, s19, s3")
    e("s_mul_i32 s20, s19, 1280")
    e("v_lshlrev_b32 v15, 2, v1")
    for i in range(5):
        e(f"buffer_load_dword v{132+i}, v15, s[32:35], s20 offen offset:{256*i}")
        e(f"buffer_load_dword v{138+i}, v15, s[36:39], 0 offen offset:{256*i}")
    e("s_waitcnt vmcnt(0)")
    e(f"s_mov_b32 s20, {WS_WOP}")
    e(f"buffer_store_dwordx4 v[128:131], v14, s[24:27], s20 offen")
    e("v_mov_b32 v16, 0")
    for i in range(5):
        e(f"v_dot2_f32_bf16 v16, v{132+i}, v{138+i}, v16")
    e("s_nop 2")
    for sh in (1, 2, 4, 8):
        e(f"v_add_f32_dpp v16, v16, v16 row_shr:{sh} row_mask:0xf bank_mask:0xf bound_ctrl:0")
        e("s_nop 1")
    e("v_add_f32_dpp v16, v16, v16 row_bcast:15 row_mask:0xa bank_mask:0xf")
    e("s_nop 1")
    e("v_add_f32_dpp v16, v16, v16 row_bcast:31 row_mask:0xc bank_mask:0xf")
    e(f"v_mul_f32 v16, {f2u(-L2E)}, v16")
    e("v_exp_f32 v16, v16")
    e("s_nop 0")
    e("v_add_f32 v16, 1.0, v16")
    e("v_rcp_f32 v16, v16")
    e("v_cmp_eq_u32 vcc, 63, v1")
    e("v_mov_b32 v17, 0")
    e("s_lshl_b32 s19, s19, 2")
    e("v_cndmask_b32 v17, v8, v17, vcc")
    e(f"s_add_u32 s19, s19, {WS_GG}")
    e("buffer_store_dword v16, v17, s[24:27], s19 offen")
    for i in range(1, 16):
        for k in range(4):
            e(f"v_add_f32 v{64+k}, v{64+k}, v{64+4*i+k}")
    e("v_cvt_pk_bf16_f32 v64, v64, v65")
    e("v_cvt_pk_bf16_f32 v65, v66, v67")
    e("v_lshlrev_b32 v7, 3, v0")
    e("v_min_u32 v7, 2040, v7")
    e(f"v_add_u32 v7, {K2_KVZ}, v7")
    e("v_cmp_gt_u32 vcc, 256, v0")
    e("s_and_saveexec_b64 s[40:41], vcc")
    e("ds_write_b64 v7, v[64:65]")
    e("s_mov_b64 exec, s[40:41]")
    e(f"v_mov_b32 v7, {K2_FLAG}")
    e("v_mov_b32 v8, 0")
    e("ds_write_b32 v7, v8")
    def lut(par):
        quads = [0, 2, 1, 3, 4, None, "o", "o"] if par == 0 else [1, 3, 2, 4, 0, None, "o", "o"]
        pos = [VONES if q in (None, "o") else VPOS[q] for q in quads]
        rows = [20 if q in (None, "o") else 4 * q for q in quads]
        return pos, rows
    def pack8(vals, bits=5):
        lo = sum(v << (8 * i) for i, v in enumerate(vals[:4])); hi = sum(v << (8 * i) for i, v in enumerate(vals[4:]))
        return lo, hi
    pe, re_ = lut(0); po, ro = lut(1)
    e("s_bitcmp1_b32 s14, 0")
    for k, (a, b) in enumerate(((pe, po), (re_, ro))):
        lo0, hi0 = pack8(a); lo1, hi1 = pack8(b)
        e(f"s_mov_b32 s19, {lo0}")
        e(f"s_cselect_b32 s{46+2*k}, {lo1}, s19")
        e(f"s_mov_b32 s19, {hi0}")
        e(f"s_cselect_b32 s{47+2*k}, {hi1}, s19")
    e("v_bfe_u32 v9, v1, 2, 2")
    e("v_lshlrev_b32 v9, 3, v9")
    e("v_bfe_u32 v10, v1, 4, 1")
    e("v_cmp_eq_u32 vcc, 0, v10")
    e("v_mov_b32 v11, s46")
    e("v_mov_b32 v12, s47")
    e("v_cndmask_b32 v11, v12, v11, vcc")
    e("v_lshrrev_b32 v11, v9, v11")
    e("v_and_b32 v11, 255, v11")
    e("v_mov_b32 v13, s48")
    e("v_mov_b32 v12, s49")
    e("v_cndmask_b32 v13, v12, v13, vcc")
    e("v_lshrrev_b32 v13, v9, v13")
    e("v_and_b32 v13, 255, v13")
    e("v_and_b32 v9, 3, v1")
    e("v_cmp_gt_u32 vcc, 20, v3")
    e("v_mov_b32 v10, 0")
    e("s_nop 0")
    e("v_cndmask_b32 v9, v10, v9, vcc")
    e("v_add_u32 v11, v11, v9")
    e("v_add_u32 v13, v13, v9")
    e("v_mul_u32_u24 v10, 336, v5")
    e("v_lshl_add_u32 v20, v11, 4, v10")
    e("v_add_u32 v20, 2560, v20")
    e("v_mul_u32_u24 v21, 80, v13")
    e(f"v_add_u32 v21, {K2_KVZ}, v21")
    e("v_lshl_add_u32 v22, v5, 3, v21")
    e("v_lshl_add_u32 v21, v5, 4, v21")
    e("v_lshlrev_b32 v23, 3, v1")
    e("v_add_u32 v23, 2048, v23")
    e.lab("K2_skipside")
    e("v_mov_b32 v24, v2")
    e("v_mov_b32 v25, v23")
    e("v_mov_b32 v26, v20")
    e(f"v_add_u32 v27, {CH}, v2")
    e(f"v_add_u32 v28, {CH}, v23")
    e(f"v_add_u32 v29, {CH}, v20")
    for i in range(16):
        e(f"v_mov_b32 v{O+i}, 0")
    for i in range(8):
        e(f"v_mov_b32 v{P+8+i}, 0")
        e(f"v_mov_b32 v{V+8+i}, 0")
    e("s_waitcnt vmcnt(0) lgkmcnt(0)")
    e("s_barrier")
    e(f"ds_read_b128 {vr(KL0,4)}, v24")
    e(f"ds_read_b128 {vr(KL1,4)}, v24 offset:1024")
    e(f"ds_read_b64 {vr(KH,2)}, v25")
    e(f"ds_read_b128 {vr(V,4)}, v26")
    e(f"ds_read_b128 {vr(V+4,4)}, v26 offset:672")
    e("s_waitcnt lgkmcnt(0)")
    e("s_cmp_eq_u32 s44, 0")
    e("s_cbranch_scc0 K2_havemax")
    e(m32(S[0], KL0, QL, "0"))
    e(m32(S[0] + 16, KL1, QL, "0"))
    e("s_nop 9")
    e(m32b2(S[0], KH, QH, vr(S[0], 32)))
    e("s_nop 15")
    e("s_nop 3")
    e(f"v_max_f32 v30, v{S[0]}, v{S[0]+1}")
    for i in range(1, 16):
        e(f"v_max3_f32 v30, v{S[0]+2*i}, v{S[0]+2*i+1}, v30")
    e("v_mov_b32 v31, v30")
    e("s_nop 1")
    e("v_permlane32_swap_b32 v30, v31")
    e("s_nop 1")
    e("v_max_f32 v30, v30, v31")
    for i in range(16):
        e(f"v_sub_f32 v{NM+i}, 0, v30")
    e.lab("K2_havemax")
    e("s_nop 1")
    e(m32(S[0], KL0, QL, vr(NM, 16)))
    e(m32(S[0] + 16, KL1, QL, vr(NM, 16)))
    e("s_nop 9")
    e(m32b2(S[0], KH, QH, vr(S[0], 32)))
    e(f"ds_read_b128 {vr(KL0,4)}, v24 offset:{PAIR}")
    e(f"ds_read_b128 {vr(KL1,4)}, v24 offset:{PAIR+1024}")
    e(f"ds_read_b64 {vr(KH,2)}, v25 offset:{PAIR}")
    e("s_mov_b32 s45, 0")
    e("s_waitcnt lgkmcnt(0)")
    e("s_nop 15")
    e.raw(".p2align 6")
    e.lab("K2_loop")
    def addr(kind, pair):
        base = {"kl": 24, "kh": 25, "v": 26}[kind]
        if pair >= 8: return base + 3, (pair - 8) * PAIR
        return base, pair * PAIR
    e.lg = ["V2", "V3", "KL0", "KL1", "V0", "KH", "V1"]
    for it in range(8):
        cur, nxt = S[it & 1], S[(it + 1) & 1]
        if it == 6:
            e("s_waitcnt vmcnt(0)")
            e("s_barrier")
            e("s_cmp_eq_u32 s45, 1")
            e("s_cbranch_scc0 K2_nodma")
            e("s_lshl_b32 s19, s3, 10")
            e("s_mov_b32 m0, s19")
            e(f"s_add_u32 s20, s17, {WS_KV + 3*CH}")
            e("s_add_u32 s20, s20, s19")
            for i in range(6):
                e(f"buffer_load_dwordx4 v2, s[24:27], s20 offen lds")
                if i < 5:
                    e("s_add_u32 m0, m0, 8192")
                    e("s_add_u32 s20, s20, 8192")
            e.lab("K2_nodma")
        valu = []
        for half in range(2):
            for q in range(4):
                b = cur + 16 * half + 4 * q
                valu += [f"v_exp_f32 v{b+i}, v{b+i}" for i in range(4)]
                if q >= 1:
                    pb = b - 4
                    valu += [f"v_cvt_pk_bf16_f32 v{P+8*half+2*(q-1)+i}, v{pb+2*i}, v{pb+2*i+1}" for i in range(2)]
            b = cur + 16 * half + 12
            valu += [("late", f"v_cvt_pk_bf16_f32 v{P+8*half+6+i}, v{b+2*i}, v{b+2*i+1}") for i in range(2)]
        valu = [v[1] if isinstance(v, tuple) else v for v in valu]
        assert len(valu) == 48
        def rd(tag, dst, n, kind, pair, extra):
            a, off = addr(kind, pair)
            op = "ds_read_b128" if n == 4 else "ds_read_b64"
            e.ds(f"{op} {vr(dst,n)}, v{a} offset:{off+extra}", tag)
        ms = {
            2: ("V2", m32(O, V + 8, P + 8, vr(O, 16)), lambda: rd("V2", V + 8, 4, "v", it, 1344)),
            8: ("V3", m32(O, V + 12, P + 12, vr(O, 16)), lambda: rd("V3", V + 12, 4, "v", it, 2016)),
            14: ("KL0", m32(nxt, KL0, QL, vr(NM, 16)), lambda: rd("KL0", KL0, 4, "kl", it + 2, 0)),
            19: ("KL1", m32(nxt + 16, KL1, QL, vr(NM, 16)), lambda: rd("KL1", KL1, 4, "kl", it + 2, 1024)),
            24: ("V0", m32(O, V, P, vr(O, 16)), lambda: rd("V0", V, 4, "v", it + 1, 0)),
            28: ("KH", m32b2(nxt, KH, QH, vr(nxt, 32)), lambda: rd("KH", KH, 2, "kh", it + 2, 0)),
            40: ("V1", m32(O, V + 4, P + 4, vr(O, 16)), lambda: rd("V1", V + 4, 4, "v", it + 1, 672)),
        }
        for k in range(48):
            if k in ms:
                tag, m, r = ms[k]
                e.need(tag)
                e(m)
                r()
            e(valu[k])
    assert e.lg == ["V2", "V3", "KL0", "KL1", "V0", "KH", "V1"], e.lg
    e("s_add_u32 s45, s45, 1")
    e("s_cmp_eq_u32 s45, 2")
    e(f"s_mov_b32 s19, {CH}")
    e(f"s_cselect_b32 s19, {(-2*CH) & 0xffffffff}, s19")
    for i in range(3):
        e(f"v_mov_b32 v{24+i}, v{27+i}")
        e(f"v_add_u32 v{27+i}, s19, v{27+i}")
    e("s_cmp_lt_u32 s45, 4")
    e("s_cbranch_scc1 K2_loop")
    e("s_waitcnt lgkmcnt(0)")
    e(m32(O, V + 8, P + 8, vr(O, 16)))
    e(m32(O, V + 12, P + 12, vr(O, 16)))
    OB = S[0]
    e(f"ds_read_b128 {vr(KL0,4)}, v21")
    e(f"ds_read_b128 {vr(KL1,4)}, v21 offset:32")
    e(f"ds_read_b64 {vr(KH,2)}, v22 offset:64")
    e("s_waitcnt lgkmcnt(0)")
    e("s_nop 7")
    e(m32(OB, KL0, PQ, "0"))
    e(m32(OB, KL1, PQ + 4, vr(OB, 16)))
    e(m32k8(OB, KH, PQ + 8, vr(OB, 16)))
    e("s_cmp_eq_u32 s44, 0")
    e("s_cbranch_scc0 K2_checked")
    e(f"v_mov_b32 v30, {f2u(2.0**64)}")
    e(f"v_cmp_nlt_f32 vcc, v{O+12}, v30")
    e("s_mov_b64 s[40:41], vcc")
    e("v_mov_b32 v32, 0x207")
    for i in range(12):
        e(f"v_cmp_class_f32 vcc, v{O+i}, v32")
        e("s_or_b64 s[40:41], s[40:41], vcc")
    e(f"v_mov_b32 v30, {K2_FLAG}")
    e("s_cmp_eq_u64 s[40:41], 0")
    e("s_cbranch_scc1 K2_ok")
    e("v_mov_b32 v31, 1")
    e("ds_write_b32 v30, v31")
    e.lab("K2_ok")
    e("s_waitcnt lgkmcnt(0)")
    e("s_barrier")
    e("ds_read_b32 v31, v30")
    e("s_waitcnt lgkmcnt(0)")
    e("v_readfirstlane_b32 s19, v31")
    e("s_nop 3")
    e("s_cmp_eq_u32 s19, 0")
    e("s_cbranch_scc0 K2_fallback")
    e.lab("K2_checked")
    e("s_lshr_b32 s19, s14, 1")
    e("s_mul_i32 s19, s19, 1280")
    e(f"s_mul_i32 s20, s18, {2*OI_TILE}")
    e("s_add_u32 s19, s19, s20")
    e(f"s_add_u32 s19, s19, {WS_OI}")
    e("s_and_b32 s20, s14, 1")
    e("s_mul_i32 s21, s20, 768")
    e("s_add_u32 s21, s21, s19")
    e("s_lshl_b32 s22, s20, 3")
    e("s_add_u32 s22, s22, s19")
    e("s_add_u32 s22, s22, 512")
    e("v_bfe_u32 v30, v1, 4, 1")
    e(f"v_mul_u32_u24 v30, {OI_TILE}, v30")
    e("v_and_b32 v31, 15, v1")
    e("v_lshl_add_u32 v30, v31, 4, v30")
    e("v_lshrrev_b32 v31, 5, v1")
    e("v_lshl_add_u32 v31, v31, 8, v30")
    e("v_mov_b32 v32, 0x40000000")
    e("v_cmp_gt_u32 vcc, 32, v1")
    e("s_nop 1")
    e("v_cndmask_b32 v30, v32, v30, vcc")
    e(f"v_add_f32 v{OB+12}, {f2u(1e-6)}, v{OB+12}")
    for br, R in enumerate((O, OB)):
        e(f"v_rcp_f32 v33, v{R+12}")
        e("s_nop 0")
        for i in range(12):
            e(f"v_mul_f32 v{R+i}, v{R+i}, v33")
        d = 36 + 8 * br
        for i in range(6):
            e(f"v_cvt_pk_bf16_f32 v{d+i}, v{R+2*i}, v{R+2*i+1}")
        e(f"buffer_store_dwordx4 {vr(d,4)}, v31, s[24:27], s21 offen")
        e(f"buffer_store_dwordx2 {vr(d+4,2)}, v30, s[24:27], s22 offen")
        if br == 0:
            e("s_add_u32 s21, s21, 20480")
            e("s_add_u32 s22, s22, 20480")
    e.lab("K2_end")
    e("s_endpgm")
    e.lab("K2_fallback")
    e("s_mov_b32 s44, 1")
    e("s_mov_b32 s45, 0")
    e(f"v_mov_b32 v30, {f2u(float('-inf'))}")
    e(f"s_add_u32 s20, s17, {WS_KV}")
    e.lab("K2_fb_loop")
    e(f"buffer_load_dwordx4 {vr(KL0,4)}, v2, s[24:27], s20 offen")
    e(f"buffer_load_dwordx4 {vr(KL1,4)}, v2, s[24:27], s20 offen offset:1024")
    e(f"buffer_load_dwordx2 {vr(KH,2)}, v23, s[24:27], s20 offen")
    e("s_waitcnt vmcnt(0)")
    e(m32(S[0], KL0, QL, "0"))
    e(m32(S[0] + 16, KL1, QL, "0"))
    e("s_nop 9")
    e(m32b2(S[0], KH, QH, vr(S[0], 32)))
    e("s_nop 15")
    e("s_nop 3")
    for i in range(16):
        e(f"v_max3_f32 v30, v{S[0]+2*i}, v{S[0]+2*i+1}, v30")
    e(f"s_add_u32 s20, s20, {PAIR}")
    e("s_add_u32 s45, s45, 1")
    e("s_cmp_lt_u32 s45, 32")
    e("s_cbranch_scc1 K2_fb_loop")
    e("v_mov_b32 v31, v30")
    e("s_nop 1")
    e("v_permlane32_swap_b32 v30, v31")
    e("s_nop 1")
    e("v_max_f32 v30, v30, v31")
    for i in range(16):
        e(f"v_sub_f32 v{NM+i}, 0, v30")
    e("s_barrier")
    e("s_branch K2_restart")
    return head("k2_kernel") + e.text() + kd("k2_kernel", 224, 56)

K3_BUF = 40960
K3_LDS = 3 * K3_BUF

def k3():
    e = E()
    ACC = 16
    WR = 56; NWR = 8
    OF = 96
    e("s_cmp_ge_u32 s2, 256")
    e("s_cbranch_scc1 K3_end")
    e("s_load_dwordx2 s[4:5], s[0:1], 64")
    e("s_load_dwordx2 s[12:13], s[0:1], 80")
    e("v_lshrrev_b32 v1, 6, v0")
    e("s_and_b32 s14, s2, 7")
    e("v_readfirstlane_b32 s3, v1")
    e("s_lshr_b32 s15, s2, 3")
    e("s_lshl_b32 s14, s14, 2")
    e("s_lshr_b32 s16, s15, 3")
    e("s_add_u32 s14, s14, s16")
    e("s_and_b32 s15, s15, 7")
    e("v_and_b32 v1, 63, v0")
    e("v_lshlrev_b32 v2, 4, v1")
    e("s_and_b32 s16, s3, 1")
    e("s_lshr_b32 s17, s3, 1")
    e("s_waitcnt lgkmcnt(0)")
    srd(e, 24, 12, WS_SIZE)
    srd(e, 28, 4, 2621440)
    e("s_lshl_b32 s18, s14, 2")
    e("s_lshl_b32 s19, s16, 1")
    e("s_add_u32 s18, s18, s19")
    e(f"s_mul_i32 s20, s18, {OI_TILE}")
    e("s_mul_i32 s19, s17, 20480")
    e("s_add_u32 s20, s20, s19")
    e(f"s_add_u32 s20, s20, {WS_OI}")
    e(f"s_add_u32 s21, s20, {OI_TILE}")
    e(f"s_mul_i32 s22, s15, {WOP_TILE}")
    e("s_mul_i32 s23, s17, 102400")
    e("s_add_u32 s22, s22, s23")
    e("s_mul_i32 s23, s16, 10240")
    e("s_add_u32 s22, s22, s23")
    e(f"s_add_u32 s22, s22, {WS_WOP}")
    e("s_add_u32 s23, s23, s19")
    def stage_load(st):
        e(f"s_add_u32 m0, s23, {(st%3)*K3_BUF}")
        e("s_mov_b32 s32, s22")
        for n in range(10):
            e(f"buffer_load_dwordx4 v2, s[24:27], s32 offen lds")
            if n < 9:
                e("s_add_u32 m0, m0, 1024")
                e("s_add_u32 s32, s32, 1024")
        e("s_add_u32 s22, s22, 20480")
        for s in range(4):
            for b in range(2):
                e(f"buffer_load_dwordx4 {vr(OF+((st*4+s)*2+b)*4,4)}, v2, s[24:27], s{20+b} offen offset:{s*1024}")
        e("s_add_u32 s20, s20, 4096")
        e("s_add_u32 s21, s21, 4096")
    e("v_and_b32 v3, 15, v1")
    e("s_add_u32 s33, s18, s17")
    e("s_lshl_b32 s33, s33, 4")
    e("s_lshl_b32 s34, s33, 2")
    e(f"s_add_u32 s34, s34, {WS_GG}")
    e("v_lshlrev_b32 v4, 2, v3")
    e("buffer_load_dword v8, v4, s[24:27], s34 offen")
    for st in range(3): stage_load(st)
    e("v_lshrrev_b32 v5, 2, v1")
    e("v_mul_u32_u24 v4, 160, v5")
    e("v_and_b32 v5, 3, v1")
    e("v_lshl_add_u32 v4, v5, 3, v4")
    e("v_add_u32 v4, s19, v4")
    e(f"v_add_u32 v5, {K3_BUF}, v4")
    e(f"v_add_u32 v6, {2*K3_BUF}, v4")
    for i in range(40):
        e(f"v_mov_b32 v{ACC+i}, 0")
    LA = 5
    for st in range(5):
        e(f"s_waitcnt vmcnt({[36, 18, 18, 18, 0][st]})")
        e("s_barrier")
        if 1 <= st <= 2: stage_load(st + 2)
        e.lg = []
        def rd(tau):
            s, t = divmod(tau, 5)
            slot = WR + (tau % NWR) * 4
            for jj in range(2):
                e.ds(f"ds_read_b64_tr_b16 {vr(slot+2*jj,2)}, v{4+st%3} offset:{(32*s+16*jj)*160+32*t}", tau)
        for tau in range(LA): rd(tau)
        for tau in range(20):
            if tau + LA < 20: rd(tau + LA)
            e.need(tau)
            s, t = divmod(tau, 5)
            slot = WR + (tau % NWR) * 4
            for b in range(2):
                a = ACC + (t * 2 + b) * 4
                e(m16(a, slot, OF + ((st * 4 + s) * 2 + b) * 4, vr(a, 4)))
    e("s_lshl_b32 s35, s3, 13")
    e("s_xor_b32 s36, s35, 16384")
    e(f"s_add_u32 s35, s35, {2*K3_BUF}")
    e(f"s_add_u32 s36, s36, {2*K3_BUF}")
    e("v_add_u32 v9, s35, v2")
    e("v_add_u32 v10, s36, v2")
    e("s_cmp_eq_u32 s17, 0")
    e("s_cbranch_scc0 K3_br1")
    def fin(keep):
        send = 1 - keep
        e("s_nop 4")
        for t in range(5):
            e(f"ds_write_b128 v9, {vr(ACC+(t*2+send)*4,4)} offset:{t*1024}")
        e("s_waitcnt lgkmcnt(0)")
        e("s_barrier")
        for t in range(5):
            e(f"ds_read_b128 {vr(WR+4*t,4)}, v10 offset:{t*1024}")
        e("v_add_u32 v11, s33, v3")
        e("v_mul_u32_u24 v11, 1280, v11")
        e("v_lshrrev_b32 v12, 4, v1")
        e("v_lshl_add_u32 v11, v12, 3, v11")
        e("s_mul_i32 s36, s15, 160")
        e("s_waitcnt lgkmcnt(0)")
        for t in range(5):
            own = ACC + (t * 2 + keep) * 4
            oth = WR + 4 * t
            A, B = (own, oth) if keep == 0 else (oth, own)
            for i in range(4):
                e(f"v_sub_f32 v{A+i}, v{A+i}, v{B+i}")
                e(f"v_fma_f32 v{A+i}, v{A+i}, v8, v{B+i}")
            e(f"v_cvt_pk_bf16_f32 v{80+2*t}, v{A}, v{A+1}")
            e(f"v_cvt_pk_bf16_f32 v{81+2*t}, v{A+2}, v{A+3}")
            e(f"buffer_store_dwordx2 {vr(80+2*t,2)}, v11, s[28:31], s36 offen offset:{32*t}")
        e("s_endpgm")
    fin(0)
    e.lab("K3_br1")
    fin(1)
    e.lab("K3_end")
    e("s_endpgm")
    return head("k3_kernel") + e.text() + kd("k3_kernel", 256, 48)
```

```python
import sys, struct

NAME = "gated_mix__mha_block__linear_kernel_hedgehog__prompt"

PAIR = 5248
HEADSZ = 32 * PAIR
WS_QA = 0
WS_KV = 0x600000
WS_PHIQ = 0xC00000
PHIQ_HEAD = 64 * 2560
WS_KVP = 0x1200000
KVP_ONE = 21 * 40 * 4
KVP_HEAD = 16 * KVP_ONE
WS_OI = 0x1400000
OI_TILE = 160 * 256
WS_WOP = 0x1A00000
WOP_TILE = 1280 * 160
WS_GG = 0x1C00000
WS_SIZE = 0x2000000
VPOS = [0, 13, 8, 4, 17]
VONES = 12
L2E = 1.4426950408889634
QSCALE = L2E / (20 ** 0.5)

def f2u(x):
    return struct.unpack("<I", struct.pack("<f", x))[0]

class E:
    def __init__(self):
        self.l = []
        self.lg = []
        self.vm = []
    def __call__(self, s):
        self.l.append("    " + s)
    def lab(self, s):
        self.l.append(s + ":")
    def raw(self, s):
        self.l.append(s)
    def c(self, s):
        self.l.append("    ; " + s)
    def ds(self, s, tag=None):
        self(s); self.lg.append(tag)
    def need(self, *tags):
        idx = max((i for i, t in enumerate(self.lg) if t in tags), default=-1)
        if idx < 0: return
        n = len(self.lg) - 1 - idx
        assert n <= 15
        self(f"s_waitcnt lgkmcnt({n})")
        self.lg = self.lg[idx + 1:]
    def lg0(self):
        self("s_waitcnt lgkmcnt(0)"); self.lg = []
    def text(self):
        return "\n".join(self.l) + "\n"

def vr(a, n):
    return f"v[{a}:{a+n-1}]" if n > 1 else f"v{a}"
def sr(a, n):
    return f"s[{a}:{a+n-1}]" if n > 1 else f"s{a}"

def srd(e, d, base, nrec):
    e(f"s_mov_b32 s{d}, s{base}")
    e(f"s_mov_b32 s{d+1}, s{base+1}")
    e(f"s_mov_b32 s{d+2}, {nrec}")
    e(f"s_mov_b32 s{d+3}, 0x20000")

def kd(name, vgpr, sgpr):
    acc = (vgpr + 3) // 4 * 4
    return f""".section .rodata,"a"
.p2align 6
.amdhsa_kernel {name}
  .amdhsa_next_free_vgpr {vgpr}
  .amdhsa_next_free_sgpr {sgpr}
  .amdhsa_accum_offset {acc}
  .amdhsa_group_segment_fixed_size 0
  .amdhsa_kernarg_size 88
  .amdhsa_user_sgpr_count 2
  .amdhsa_user_sgpr_kernarg_segment_ptr 1
  .amdhsa_system_sgpr_workgroup_id_x 1
.end_amdhsa_kernel
.text
"""

def head(name):
    return f""".globl {name}
.p2align 8
.type {name},@function
{name}:
"""

m16 = lambda d, a, b, c: f"v_mfma_f32_16x16x32_bf16 {vr(d,4)}, {vr(a,4)}, {vr(b,4)}, {c}"
m16k16 = lambda d, a, b, c: f"v_mfma_f32_16x16x16_bf16 {vr(d,4)}, {vr(a,2)}, {vr(b,2)}, {c}"
m32 = lambda d, a, b, c: f"v_mfma_f32_32x32x16_bf16 {vr(d,16)}, {vr(a,4)}, {vr(b,4)}, {c}"
m32k8 = lambda d, a, b, c: f"v_mfma_f32_32x32x8_bf16 {vr(d,16)}, {vr(a,2)}, {vr(b,2)}, {c}"
m32b2 = lambda d, a, b, c: f"v_mfma_f32_32x32x4_2b_bf16 {vr(d,32)}, {vr(a,2)}, {vr(b,2)}, {c}"

K1_BUF = 47104
K1_XOFF = 30720
K1_WPHI = 3 * K1_BUF
K1_LDS = K1_WPHI + 4096

def k1():
    e = E()
    e("s_cmp_ge_u32 s2, 256")
    e("s_cbranch_scc1 K1_end")
    e("s_load_dwordx4 s[4:7], s[0:1], 0")
    e("s_load_dwordx4 s[8:11], s[0:1], 32")
    e("s_load_dwordx2 s[12:13], s[0:1], 80")
    e("v_lshrrev_b32 v1, 6, v0")
    e("s_and_b32 s14, s2, 7")
    e("v_readfirstlane_b32 s3, v1")
    e("s_lshr_b32 s15, s2, 3")
    e("s_lshr_b32 s16, s14, 2")
    e("s_lshl_b32 s16, s16, 3")
    e("s_lshr_b32 s17, s15, 2")
    e("s_add_u32 s16, s16, s17")
    e("s_and_b32 s17, s14, 3")
    e("s_lshl_b32 s17, s17, 2")
    e("s_and_b32 s18, s15, 3")
    e("s_add_u32 s17, s17, s18")
    e("s_lshr_b32 s18, s17, 3")
    e("s_and_b32 s17, s17, 7")
    e("v_and_b32 v1, 63, v0")
    e("s_waitcnt lgkmcnt(0)")
    e("s_cmp_ge_u32 s3, 4")
    e("s_cbranch_scc0 K1_compute")
    e("s_cmp_eq_u32 s3, 7")
    e("s_cbranch_scc1 K1_xload")
    e("s_sub_u32 s19, s3, 4")
    e("s_add_u32 s20, s19, s18")
    e("s_cmp_ge_u32 s20, 2")
    e("s_cselect_b64 s[24:25], s[6:7], s[8:9]")
    e("s_mov_b32 s26, 2457600")
    e("s_mov_b32 s27, 0x20000")
    e("s_mul_i32 s21, s17, 160")
    e("s_cmp_eq_u32 s19, 0")
    e("s_movk_i32 s22, 2560")
    e("s_cselect_b32 s22, 1280, s22")
    e("s_add_u32 s22, s22, s21")
    e("s_mul_i32 s23, s19, 160")
    e("s_add_u32 s23, s23, s21")
    e("s_add_u32 s23, s23, s21")
    e("s_sub_u32 s23, s23, 160")
    e("s_cmp_eq_u32 s19, 0")
    e("s_cselect_b32 s23, s21, s23")
    e("s_cmp_eq_u32 s18, 0")
    e("s_cselect_b32 s28, s22, s23")
    e("s_mul_i32 s29, s19, 10240")
    e("s_movk_i32 s30, 3840")
    for q in range(10):
        e(f"v_add_u32 v2, {64*q}, v1")
        e("v_mul_u32_u24 v3, 6554, v2")
        e("v_lshrrev_b32 v3, 16, v3")
        e("v_mul_u32_u24 v4, 10, v3")
        e("v_sub_u32 v4, v2, v4")
        e("v_and_b32 v5, 35, v3")
        e("v_bfe_u32 v6, v3, 2, 2")
        e("v_lshl_add_u32 v5, v6, 3, v5")
        e("v_bfe_u32 v6, v3, 4, 1")
        e("v_lshl_add_u32 v5, v6, 2, v5")
        e("v_lshlrev_b32 v4, 4, v4")
        e(f"v_mad_u32_u24 v{10+q}, v5, s30, v4")
    def wchunk(buf_sreg):
        e(f"s_add_u32 m0, {buf_sreg}, s29")
        for q in range(10):
            e("s_nop 0")
            e(f"buffer_load_dwordx4 v{10+q}, s[24:27], s28 offen lds")
            if q < 9: e("s_add_u32 m0, m0, 1024")
        e("s_add_u32 s28, s28, 245760")
    def loader_loop(name, chunk, n):
        for c in range(3):
            e(f"s_mov_b32 s31, {c*K1_BUF}")
            chunk("s31")
        e(f"s_waitcnt vmcnt({2*n})")
        e("s_barrier")
        e("s_mov_b32 s31, 0")
        e("s_mov_b32 s32, 1")
        e.lab(f"{name}_loop")
        e(f"s_waitcnt vmcnt({n})")
        e("s_barrier")
        chunk("s31")
        e(f"s_add_u32 s31, s31, {K1_BUF}")
        e(f"s_cmp_eq_u32 s31, {3*K1_BUF}")
        e("s_cselect_b32 s31, 0, s31")
        e("s_add_u32 s32, s32, 1")
        e("s_cmp_lt_u32 s32, 8")
        e(f"s_cbranch_scc1 {name}_loop")
        e(f"s_waitcnt vmcnt({n})")
        e("s_barrier")
        e("s_waitcnt vmcnt(0)")
        e("s_barrier")
        e("s_endpgm")
    loader_loop("K1_wl", wchunk, 10)
    e.lab("K1_xload")
    srd(e, 24, 4, 2621440)
    e("s_mul_i32 s19, s17, 3200")
    e("s_add_u32 s36, s10, s19")
    e("s_addc_u32 s37, s11, 0")
    e("s_mov_b32 s38, 3200")
    e("s_mov_b32 s39, 0x20000")
    e("v_lshlrev_b32 v2, 4, v1")
    e(f"s_mov_b32 m0, {K1_WPHI}")
    e("s_nop 0")
    for q in range(4):
        e(f"buffer_load_dwordx4 v2, s[36:39], 0 offen offset:{q*1024} lds")
    e("v_lshrrev_b32 v3, 3, v1")
    e("v_and_b32 v4, 7, v1")
    e("v_xor_b32 v4, v4, v3")
    e("v_lshlrev_b32 v4, 4, v4")
    e("s_movk_i32 s30, 1280")
    e("v_mad_u32_u24 v10, v3, s30, v4")
    e("s_mul_i32 s28, s16, 163840")
    def xchunk(buf_sreg):
        e(f"s_add_u32 m0, {buf_sreg}, {K1_XOFF}")
        e("s_mov_b32 s33, s28")
        for q in range(16):
            e(f"buffer_load_dwordx4 v10, s[24:27], s33 offen lds")
            if q < 15:
                e("s_add_u32 m0, m0, 1024")
                e("s_add_u32 s33, s33, 10240")
        e("s_add_u32 s28, s28, 128")
    loader_loop("K1_xl", xchunk, 16)

    e.lab("K1_compute")
    srd(e, 24, 12, WS_SIZE)
    ACC = 128
    acc = lambda G, t, b: ACC + ((G * 5 + t) * 2 + b) * 4
    WR = 64; NWR = 16
    XF = 48
    e("v_and_b32 v2, 15, v1")
    e("v_lshrrev_b32 v3, 4, v1")
    e("v_lshrrev_b32 v5, 2, v1")
    e("v_mul_u32_u24 v4, 160, v5")
    e("v_and_b32 v5, 3, v1")
    e("v_mul_u32_u24 v5, 40, v5")
    e("v_add_u32 v4, v4, v5")
    e("v_and_b32 v6, 7, v2")
    e("v_lshrrev_b32 v7, 3, v2")
    e("v_lshl_add_u32 v7, v7, 4, v6")
    e("s_lshl_b32 s19, s3, 5")
    e("v_add_u32 v8, s19, v7")
    e("v_lshlrev_b32 v8, 7, v8")
    e("v_xor_b32 v6, v6, v3")
    e("v_lshl_add_u32 v5, v6, 4, v8")
    e(f"v_add_u32 v5, {K1_XOFF}, v5")
    e("v_xor_b32 v6, 64, v5")
    for i in range(120):
        e(f"v_mov_b32 v{ACC+i}, 0")
    e("s_mov_b32 s32, 0")
    e(f"s_mov_b32 s33, {K1_BUF}")
    e(f"s_mov_b32 s34, {-2*K1_BUF & 0xffffffff}")
    e("s_mov_b32 s35, 0")
    e("s_cmp_eq_u32 s18, 0")
    e("s_cbranch_scc0 K1_main2")

    def mainloop(name, orient):
        LA = 6
        e.lab(name)
        e("s_barrier")
        e.lg = []
        def rd_w(tau):
            j, rem = divmod(tau, 15); G, t = divmod(rem, 5)
            slot = WR + (tau % NWR) * 4
            for jj in range(2):
                off = G * 10240 + (32 * j + 16 * jj) * 160 + 8 * t
                e.ds(f"ds_read_b64_tr_b16 {vr(slot+2*jj,2)}, v4 offset:{off}", ("w", tau))
        def rd_x(j):
            for b in range(2):
                e.ds(f"ds_read_b128 {vr(XF+(j*2+b)*4,4)}, v{5+j} offset:{b*1024}", ("x", j))
        rd_x(0)
        for tau in range(LA): rd_w(tau)
        for tau in range(30):
            if tau == 7: rd_x(1)
            if tau + LA < 30: rd_w(tau + LA)
            j, rem = divmod(tau, 15); G, t = divmod(rem, 5)
            e.need(("w", tau), ("x", j))
            slot = WR + (tau % NWR) * 4
            for b in range(2):
                a = acc(G, t, b); xf = XF + (j * 2 + b) * 4
                if orient[G] == "T": e(m16(a, slot, xf, vr(a, 4)))
                else: e(m16(a, xf, slot, vr(a, 4)))
        e("s_add_u32 s35, s35, 1")
        e("s_cmp_eq_u32 s35, 3")
        e("s_cselect_b32 s36, s34, s33")
        e("s_cselect_b32 s35, 0, s35")
        e("v_add_u32 v4, s36, v4")
        e("v_add_u32 v5, s36, v5")
        e("v_add_u32 v6, s36, v6")
        e("s_add_u32 s32, s32, 1")
        e("s_cmp_lt_u32 s32, 10")
        e(f"s_cbranch_scc1 {name}")
        e("s_nop 7")

    AF = 16
    PK = 66
    XX = 76
    EM = 96
    TMP = 116
    def load_wphi():
        e("v_bfe_u32 v9, v1, 2, 2")
        e("v_mul_u32_u24 v9, 40, v9")
        e("v_mul_u32_u24 v10, 800, v3")
        e("v_add_u32 v9, v9, v10")
        e("v_and_b32 v10, 3, v1")
        e("v_cmp_eq_u32 vcc, v10, v3")
        e("v_mov_b32 v10, 3200")
        e("s_nop 1")
        e("v_cndmask_b32 v9, v10, v9, vcc")
        e(f"v_add_u32 v9, {K1_WPHI}, v9")
        for tp in range(5):
            for q in range(5):
                e(f"ds_read_b64_tr_b16 {vr(AF+tp*10+2*q,2)}, v9 offset:{q*160+8*tp}")
            if tp % 2 == 1: e("s_waitcnt lgkmcnt(0)")
        e("s_waitcnt lgkmcnt(0)")
    def phi(b, out):
        for t in range(5):
            a = acc(0, t, b)
            e(f"v_cvt_pk_bf16_f32 v{PK+2*t}, v{a}, v{a+1}")
            e(f"v_cvt_pk_bf16_f32 v{PK+2*t+1}, v{a+2}, v{a+3}")
        e("s_nop 1")
        for tp in range(5): e(m16(XX+4*tp, AF+tp*10, PK, "0"))
        for tp in range(5): e(m16(XX+4*tp, AF+tp*10+4, PK+4, vr(XX+4*tp, 4)))
        for tp in range(5): e(m16k16(XX+4*tp, AF+tp*10+8, PK+8, vr(XX+4*tp, 4)))
        e("s_nop 7")
        mx, mn, sp, sm = TMP, TMP+1, TMP+2, TMP+3
        e(f"v_max_f32 v{mx}, v{XX}, v{XX+1}")
        e(f"v_min_f32 v{mn}, v{XX}, v{XX+1}")
        for i in range(1, 10):
            e(f"v_max3_f32 v{mx}, v{XX+2*i}, v{XX+2*i+1}, v{mx}")
            e(f"v_min3_f32 v{mn}, v{XX+2*i}, v{XX+2*i+1}, v{mn}")
        e(f"v_mul_f32 v{mx}, s40, v{mx}")
        e(f"v_mul_f32 v{mn}, s40, v{mn}")
        for i in range(20):
            e(f"v_fma_f32 v{EM+i}, -v{XX+i}, s40, v{mn}")
            e(f"v_fma_f32 v{XX+i}, v{XX+i}, s40, -v{mx}")
        for i in range(20):
            e(f"v_exp_f32 v{EM+i}, v{EM+i}")
            e(f"v_exp_f32 v{XX+i}, v{XX+i}")
        e("s_nop 0")
        e(f"v_add_f32 v{sp}, v{XX}, v{XX+1}")
        e(f"v_add_f32 v{sm}, v{EM}, v{EM+1}")
        for i in range(2, 20):
            e(f"v_add_f32 v{sp}, v{sp}, v{XX+i}")
            e(f"v_add_f32 v{sm}, v{sm}, v{EM+i}")
        e(f"v_rcp_f32 v{sp}, v{sp}")
        e(f"v_rcp_f32 v{sm}, v{sm}")
        e("s_nop 0")
        for i in range(20):
            e(f"v_mul_f32 v{XX+i}, v{XX+i}, v{sp}")
            e(f"v_mul_f32 v{EM+i}, v{EM+i}, v{sm}")
        for i in range(10):
            e(f"v_cvt_pk_bf16_f32 v{out+i}, v{XX+2*i}, v{XX+2*i+1}")
            e(f"v_cvt_pk_bf16_f32 v{out+10+i}, v{EM+2*i}, v{EM+2*i+1}")

    mainloop("K1_main1", "TVV")
    e(f"s_mov_b32 s40, {f2u(L2E)}")
    e("s_lshl_b32 s19, s16, 2")
    e("s_add_u32 s19, s19, s3")
    e("s_lshr_b32 s20, s19, 1")
    e(f"s_mul_i32 s20, s20, {PAIR}")
    e("s_and_b32 s21, s19, 1")
    e("s_mul_i32 s21, s21, 1344")
    e("s_add_u32 s20, s20, s21")
    e(f"s_mul_i32 s21, s17, {4*HEADSZ}")
    e("s_add_u32 s20, s20, s21")
    e(f"s_add_u32 s20, s20, {WS_KV + 2560}")
    e("v_lshrrev_b32 v9, 2, v2")
    e(f"s_mov_b32 s21, {HEADSZ}")
    e("v_mul_lo_u32 v9, v9, s21")
    e("v_mul_u32_u24 v10, 336, v3")
    e("v_add_u32 v9, v9, v10")
    e("v_and_b32 v10, 3, v1")
    e("v_lshl_add_u32 v11, v10, 4, v9")
    for t in range(5):
        a0, a1 = acc(2, t, 0), acc(2, t, 1)
        d = 16 + 4 * t
        e(f"v_cvt_pk_bf16_f32 v{d}, v{a0}, v{a0+1}")
        e(f"v_cvt_pk_bf16_f32 v{d+1}, v{a0+2}, v{a0+3}")
        e(f"v_cvt_pk_bf16_f32 v{d+2}, v{a1}, v{a1+1}")
        e(f"v_cvt_pk_bf16_f32 v{d+3}, v{a1+2}, v{a1+3}")
        e(f"buffer_store_dwordx4 {vr(d,4)}, v11, s[24:27], s20 offen offset:{VPOS[t]*16}")
    for i in range(4):
        e(f"v_mov_b32 v{36+i}, 0x3f803f80")
    e(f"buffer_store_dwordx4 v[36:39], v9, s[24:27], s20 offen offset:{VONES*16}")
    e("v_lshrrev_b32 v9, 2, v2")
    e("s_lshl_b32 s21, s3, 2")
    e("v_add_u32 v9, s21, v9")
    e("v_mul_u32_u24 v9, 20, v9")
    e("v_add_u32 v9, v9, v10")
    e("v_lshlrev_b32 v9, 6, v9")
    e("v_lshl_add_u32 v9, v3, 4, v9")
    e(f"v_add_u32 v9, {2*K1_BUF}, v9")
    for t in range(5):
        a0, a1 = acc(1, t, 0), acc(1, t, 1)
        d = 40 + 4 * t
        e(f"v_cvt_pk_bf16_f32 v{d}, v{a0}, v{a0+1}")
        e(f"v_cvt_pk_bf16_f32 v{d+1}, v{a0+2}, v{a0+3}")
        e(f"v_cvt_pk_bf16_f32 v{d+2}, v{a1}, v{a1+1}")
        e(f"v_cvt_pk_bf16_f32 v{d+3}, v{a1+2}, v{a1+3}")
        e(f"ds_write_b128 v9, {vr(d,4)} offset:{t*256}")
    e("s_waitcnt vmcnt(0) lgkmcnt(0)")
    load_wphi()
    e("s_lshl_b32 s21, s3, 5")
    e("v_add_u32 v9, s21, v2")
    e("v_mul_u32_u24 v9, 352, v9")
    e("v_mul_u32_u24 v10, 80, v3")
    e("v_add_u32 v9, v9, v10")
    e(f"v_add_u32 v9, {K1_BUF}, v9")
    OUTP = acc(1, 0, 0)
    for b in range(2):
        phi(b, OUTP + 20 * b)
        for c in range(5):
            e(f"ds_write_b128 v9, {vr(OUTP+20*b+4*c,4)} offset:{b*16*352+16*c}")
    e("s_waitcnt lgkmcnt(0)")
    e("s_barrier")
    e("v_lshrrev_b32 v9, 2, v1")
    e("v_mul_u32_u24 v9, 352, v9")
    e("v_and_b32 v10, 3, v1")
    e("v_lshl_add_u32 v9, v10, 3, v9")
    e("s_mul_i32 s21, s3, 80")
    e(f"s_add_u32 s21, s21, {K1_BUF}")
    e("v_add_u32 v9, s21, v9")
    e("v_lshlrev_b32 v10, 6, v2")
    e("v_lshl_add_u32 v10, v3, 4, v10")
    e("s_mul_i32 s21, s3, 1280")
    e(f"s_add_u32 s21, s21, {2*K1_BUF}")
    e("v_add_u32 v10, s21, v10")
    KA = 16
    KB = 64
    KD = 96
    for s in range(4):
        for ft in range(3):
            for b in range(2):
                e(f"ds_read_b64_tr_b16 {vr(KA+(s*3+ft)*4+2*b,2)}, v9 offset:{(s*32+b*16)*352+ft*32}")
        for nt in range(2):
            e(f"ds_read_b128 {vr(KB+(s*2+nt)*4,4)}, v10 offset:{s*5120+nt*1024}")
        e("s_waitcnt lgkmcnt(0)")
    e("v_cmp_eq_u32 vcc, 4, v2")
    e("v_mov_b32 v11, 0x3f803f80")
    e("s_nop 1")
    for s in range(4):
        for i in range(4):
            r = KB + (s * 2 + 1) * 4 + i
            e(f"v_cndmask_b32 v{r}, v{r}, v11, vcc")
    e("s_nop 1")
    for s in range(4):
        for ft in range(3):
            for nt in range(2):
                d = KD + (ft * 2 + nt) * 4
                e(m16(d, KA + (s * 3 + ft) * 4, KB + (s * 2 + nt) * 4, "0" if s == 0 else vr(d, 4)))
    e("s_lshl_b32 s21, s17, 2")
    e("s_add_u32 s21, s21, s3")
    e(f"s_mul_i32 s21, s21, {KVP_HEAD}")
    e(f"s_mul_i32 s22, s16, {KVP_ONE}")
    e("s_add_u32 s21, s21, s22")
    e(f"s_add_u32 s21, s21, {WS_KVP}")
    e("v_mul_u32_u24 v9, 160, v2")
    e("v_lshl_add_u32 v9, v3, 4, v9")
    e("v_mov_b32 v12, 0x40000000")
    e("v_cmp_gt_u32 vcc, 5, v2")
    e("v_cmp_gt_u32 s[42:43], 2, v3")
    e("s_nop 1")
    e("v_cndmask_b32 v10, v12, v9, vcc")
    e("v_cndmask_b32 v11, v12, v9, s[42:43]")
    e("v_cndmask_b32 v13, v12, v10, s[42:43]")
    e("s_nop 3")
    for ft in range(3):
        for nt in range(2):
            d = KD + (ft * 2 + nt) * 4
            a = [[9, 10], [9, 10], [11, 13]][ft][nt]
            e(f"buffer_store_dwordx4 {vr(d,4)}, v{a}, s[24:27], s21 offen offset:{nt*2560+ft*64}")
    e("s_endpgm")

    mainloop("K1_main2", "TTT")
    e(f"s_mov_b32 s40, {f2u(L2E)}")
    e("s_lshl_b32 s19, s16, 2")
    e("s_add_u32 s19, s19, s3")
    e("s_cmp_lt_u32 s17, 4")
    e(f"s_cselect_b32 s20, {WS_QA}, {WS_KV}")
    e(f"s_cselect_b32 s41, {f2u(QSCALE)}, 1.0")
    e("s_and_b32 s21, s17, 3")
    e(f"s_mul_i32 s21, s21, {8*HEADSZ}")
    e("s_add_u32 s20, s20, s21")
    e("s_lshr_b32 s21, s19, 1")
    e(f"s_mul_i32 s21, s21, {PAIR}")
    e("s_add_u32 s20, s20, s21")
    e("s_and_b32 s21, s19, 1")
    e("s_lshl_b32 s22, s21, 10")
    e("s_add_u32 s22, s22, s20")
    e("s_lshl_b32 s23, s21, 8")
    e("s_add_u32 s23, s23, s20")
    e("s_add_u32 s23, s23, 2048")
    e(f"s_mov_b32 s21, {HEADSZ}")
    e("v_mul_lo_u32 v9, v3, s21")
    e("v_lshl_add_u32 v10, v7, 4, v9")
    e("v_lshl_add_u32 v11, v7, 3, v9")
    for G in (1, 2):
        for b in range(2):
            d = 16 + (((G - 1) * 2 + b) * 12)
            for t in range(5):
                a = acc(G, t, b)
                for i in range(4):
                    e(f"v_mul_f32 v{a+i}, s41, v{a+i}")
                e(f"v_cvt_pk_bf16_f32 v{d+2*t}, v{a}, v{a+1}")
                e(f"v_cvt_pk_bf16_f32 v{d+2*t+1}, v{a+2}, v{a+3}")
            e(f"buffer_store_dwordx4 {vr(d,4)}, v10, s[24:27], s22 offen offset:{b*128}")
            e(f"buffer_store_dwordx4 {vr(d+4,4)}, v10, s[24:27], s22 offen offset:{b*128+512}")
            e(f"buffer_store_dwordx2 {vr(d+8,2)}, v11, s[24:27], s23 offen offset:{b*64}")
        if G == 1:
            e(f"s_add_u32 s22, s22, {4*HEADSZ}")
            e(f"s_add_u32 s23, s23, {4*HEADSZ}")
    e("s_waitcnt vmcnt(0)")
    load_wphi()
    e(f"s_mul_i32 s20, s17, {4*PHIQ_HEAD}")
    e("s_mul_i32 s21, s19, 2560")
    e("s_add_u32 s20, s20, s21")
    e(f"s_add_u32 s20, s20, {WS_PHIQ}")
    e(f"s_mov_b32 s21, {PHIQ_HEAD}")
    e("v_mul_lo_u32 v9, v3, s21")
    e("v_lshl_add_u32 v9, v7, 4, v9")
    for b in range(2):
        phi(b, OUTP + 20 * b)
        for c in range(5):
            e(f"buffer_store_dwordx4 {vr(OUTP+20*b+4*c,4)}, v9, s[24:27], s20 offen offset:{c*512+b*128}")
    e.lab("K1_end")
    e("s_endpgm")
    return head("k1_kernel") + e.text() + kd("k1_kernel", 248, 48)

if __name__ == "__main__":
    from gen23 import k2, k3, K2_LDS, K3_LDS
    hdr = f"""; generated by gen.py
; @launch kernel=k1_kernel grid=(256,1,1) block=(512,1,1) lds={K1_LDS}
; @launch kernel=k2_kernel grid=(256,1,1) block=(512,1,1) lds={K2_LDS}
; @launch kernel=k3_kernel grid=(256,1,1) block=(256,1,1) lds={K3_LDS}
.amdgcn_target "amdgcn-amd-amdhsa--gfx950"
.text
"""
    out = hdr + k1() + k2() + k3()
    open(sys.argv[1] if len(sys.argv) > 1 else f"cdna_kernels/{NAME}.s", "w").write(out)
```
